```python
import torch

def _softmax(x, axis=-1):
    return torch.softmax(x, dim=axis)

def _gelu(x):
    return torch.nn.functional.gelu(x, approximate='tanh')

def _silu(x):
    return torch.nn.functional.silu(x)

def _sigmoid(x):
    return torch.sigmoid(x)

def _layernorm(x, axis=-1, eps=1e-05):
    m = x.mean(dim=axis, keepdim=True)
    v = x.var(dim=axis, keepdim=True, unbiased=False)
    return (x - m) / torch.sqrt(v + eps)

def _scatter_add(tgt, idx, src, axis=0):
    return tgt.clone().index_add_(axis, idx, src)

def _segment_sum(src, seg, n):
    out = torch.zeros((n,) + src.shape[1:], dtype=src.dtype)
    return out.index_add_(0, seg, src)

def _pad(x, pw):
    flat = tuple((v for pair in reversed(pw) for v in pair))
    return torch.nn.functional.pad(x, flat)
kernel_name = 'parallel_sum__linear_attn_block__mixer_gmlp__prompt'

def setup_inputs():

    _w = lambda a: (lambda t: t.to(torch.bfloat16) if t.is_floating_point() else t)(torch.as_tensor(a))

    def _A_setup():
        B, S, D = (1, 2048, 576)
        return {'x': _w((lambda *s: torch.randn(*s, dtype=torch.bfloat16) * 0.05)(B, S, D)), 'wqkv': _w((lambda *s: torch.randn(*s, dtype=torch.bfloat16) * 1.6)(D, 3 * D)), 'wo': _w((lambda *s: torch.randn(*s, dtype=torch.bfloat16) * 0.2)(D, D))}
    _A_in = _A_setup()

    def _B_setup():
        B, S, D, F = (1, 2048, 576, 4608)
        Fh = F // 2
        return {'x': _w((lambda *s: torch.randn(*s, dtype=torch.bfloat16) * 0.05)(B, S, D)), 'w_in': _w((lambda *s: torch.randn(*s, dtype=torch.bfloat16) * 0.4)(D, 2 * Fh)), 'w_sp': _w(0.01 * (lambda *s: torch.randn(*s, dtype=torch.bfloat16) * 0.4)(S, S)), 'b_sp': _w(1.0 + 0.01 * (lambda *s: torch.randn(*s, dtype=torch.bfloat16) * 0.05)(S)), 'w_out': _w((lambda *s: torch.randn(*s, dtype=torch.bfloat16) * 0.05)(Fh, D))}
    _B_in = _B_setup()
    return {'A_x': _A_in['x'], 'A_wqkv': _A_in['wqkv'], 'A_wo': _A_in['wo'], 'B_x': _B_in['x'], 'B_w_in': _B_in['w_in'], 'B_w_sp': _B_in['w_sp'], 'B_b_sp': _B_in['b_sp'], 'B_w_out': _B_in['w_out']}

def reference(A_x, A_wqkv, A_wo, B_x, B_w_in, B_w_sp, B_b_sp, B_w_out):

    def _A_ref(x, wqkv, wo):
        B, S, D = x.shape
        H = 32
        Dh = D // H
        qkv = (lambda x, *d: x.permute(*d))((x @ wqkv).reshape(B, S, 3, H, Dh), 2, 0, 3, 1, 4)
        q, k, v = (qkv[0], qkv[1], qkv[2])
        phi = lambda t: torch.where(t > 0, t + 1, torch.exp(t)) + 1e-06
        pq, pk = (phi(q), phi(k))
        kv = torch.einsum('bhsd,bhse->bhde', pk, v)
        z = torch.einsum('bhsd->bhd', pk)
        num = torch.einsum('bhqd,bhde->bhqe', pq, kv)
        den = torch.einsum('bhqd,bhd->bhq', pq, z)[..., None] + 1e-06
        o = num / den
        return (lambda x, *d: x.permute(*d))(o, 0, 2, 1, 3).reshape(B, S, D) @ wo

    def _B_ref(x, w_in, w_sp, b_sp, w_out):
        B, S, D = x.shape
        F = w_in.shape[-1]
        Fh = F // 2
        z = _gelu(torch.einsum('bsd,df->bsf', x, w_in))
        z1 = z[..., :Fh].clone()
        z2 = _layernorm(z[..., Fh:], axis=-1)
        g = torch.einsum('ts,bsf->btf', w_sp, z2) + b_sp[None, :, None]
        return torch.einsum('bsf,fd->bsd', z1 * g, w_out)
    x = A_x
    xn = _layernorm(x, axis=-1)
    return x + _A_ref(xn, A_wqkv, A_wo) + _B_ref(xn, B_w_in, B_w_sp, B_b_sp, B_w_out)
```

```python
import re

TRANS = ("v_exp_f32", "v_log_f32", "v_rcp_f32", "v_rsq_f32", "v_sqrt_f32", "v_sin_f32", "v_cos_f32", "v_rcp_iflag_f32")

_reg_re = re.compile(r"^(-?)(?:abs\()?([vas])(\d+)\)?$")
_rng_re = re.compile(r"^(-?)(?:abs\()?([vas])\[(\d+):(\d+)\]\)?$")

def parse_regs(tok):
    tok = tok.strip()
    if tok.startswith("|") and tok.endswith("|"):
        tok = tok[1:-1]
    if tok.startswith("-|") and tok.endswith("|"):
        tok = tok[2:-1]
    m = _reg_re.match(tok)
    if m:
        return [(m.group(2), int(m.group(3)))]
    m = _rng_re.match(tok)
    if m:
        return [(m.group(2), i) for i in range(int(m.group(3)), int(m.group(4)) + 1)]
    if tok == "vcc": return [("vcc", 0)]
    if tok == "exec": return [("exec", 0)]
    if tok == "m0": return [("m0", 0)]
    return []

class Ins:
    __slots__ = ("text", "op", "defs", "uses", "kind", "tag", "srcC", "srcAB", "passes", "wait", "label", "target", "data", "dppsrc")
    def __init__(self, text, tag=None):
        self.text = text.strip()
        self.tag = tag
        self.wait = None
        self.label = None
        self.target = None
        self.srcC = None; self.srcAB = None; self.passes = 0; self.data = None; self.dppsrc = None
        self.defs = set(); self.uses = set(); self.kind = "other"
        t = self.text.split(";")[0].strip()
        if t.endswith(":"):
            self.label = t[:-1]; self.op = "label"; self.kind = "label"; return
        parts = t.split(None, 1)
        self.op = op = parts[0]
        rest = parts[1] if len(parts) > 1 else ""
        ops = []; cur = ""; depth = 0
        for ch in rest:
            if ch in "[(": depth += 1
            if ch in "])": depth -= 1
            if ch == "," and depth == 0:
                ops.append(cur.strip()); cur = ""
            else:
                cur += ch
        if cur.strip(): ops.append(cur.strip())
        mods = ""
        if ops:
            l = ops[-1].split(None, 1)
            if len(l) > 1:
                ops[-1] = l[0]; mods = l[1]
        R = [parse_regs(o) for o in ops]
        flat = lambda L: set(x for r in L for x in r)
        if op.startswith("v_mfma"):
            self.kind = "mfma"
            self.passes = 8 if "32x32" in op else 4
            self.defs = set(R[0]); self.srcAB = set(R[1]) | set(R[2]); self.srcC = set(R[3])
            self.uses = self.srcAB | self.srcC
        elif op.startswith("v_"):
            self.kind = "trans" if op.replace("_e32", "").replace("_e64", "") in TRANS else "valu"
            if op.startswith("v_cmp"):
                self.defs = set(R[0]); self.uses = flat(R[1:])
                assert not op.startswith("v_cmpx")
            elif op.startswith("v_permlane") and "swap" in op:
                self.defs = flat(R); self.uses = flat(R); self.kind = "permlane"
            elif op.startswith(("v_add_co", "v_sub_co", "v_addc_co", "v_subb_co", "v_subrev_co")):
                self.defs = set(R[0]) | set(R[1]); self.uses = flat(R[2:])
            elif op.startswith(("v_fmac", "v_dot2c", "v_pk_fmac")):
                self.defs = set(R[0]); self.uses = flat(R)
            elif op.startswith(("v_readfirstlane", "v_readlane")):
                self.defs = set(R[0]); self.uses = flat(R[1:]); self.kind = "readlane"
            elif op.startswith("v_writelane"):
                self.defs = set(R[0]); self.uses = flat(R)
            elif op == "v_nop":
                pass
            else:
                self.defs = set(R[0]); self.uses = flat(R[1:])
            if "_dpp" in op:
                self.dppsrc = set(R[1]); self.uses |= set(R[0])
            if "d16" in op: self.uses |= set(R[0])
        elif op.startswith("buffer_") or op.startswith("global_"):
            islds = re.search(r"\blds\b", mods) is not None
            if "load" in op and not islds:
                self.kind = "vload"; self.defs = set(R[0]); self.uses = flat(R[1:])
                if "d16" in op: self.uses |= set(R[0])
            elif "load" in op:
                self.kind = "dma"; self.uses = flat(R) | {("m0", 0)}
            elif "store" in op:
                self.kind = "vstore"; self.uses = flat(R)
                if op.endswith("x4") or op.endswith("x3"):
                    self.data = set(R[0]) if op.startswith("buffer_") else set(R[1])
            elif "atomic" in op:
                self.kind = "vatomic"; self.uses = flat(R)
                if re.search(r"\bsc0\b", mods): self.defs = set(R[0])
            else:
                self.kind = "vmisc"
        elif op.startswith("ds_"):
            if op.startswith(("ds_read", "ds_bpermute", "ds_permute", "ds_swizzle")):
                self.kind = "dsread"; self.defs = set(R[0]); self.uses = flat(R[1:])
            else:
                self.kind = "dswrite"; self.uses = flat(R)
        elif op.startswith("s_"):
            self.kind = "salu"
            if op.startswith(("s_cbranch", "s_branch")):
                self.kind = "branch"; self.target = ops[0]
            elif op.startswith(("s_waitcnt", "s_barrier", "s_nop", "s_setprio", "s_sleep", "s_endpgm")):
                self.kind = "misc"
            elif op.startswith(("s_cmp", "s_bitcmp")):
                self.uses = flat(R)
            elif op.startswith(("s_load", "s_memtime", "s_memrealtime", "s_buffer_load")):
                self.kind = "smem"; self.defs = set(R[0]); self.uses = flat(R[1:])
            elif "saveexec" in op:
                self.defs = set(R[0]) | {("exec", 0)}; self.uses = flat(R[1:]) | {("exec", 0)}
            else:
                self.defs = set(R[0]); self.uses = flat(R[1:])
                if op in ("s_addk_i32", "s_mulk_i32"): self.uses |= set(R[0])
        else:
            raise ValueError("unknown op: " + text)
    def states(self):
        if self.op == "s_nop":
            return int(self.text.split()[1], 0) + 1
        if self.kind == "label": return 0
        return 1

class Wait:
    def __init__(self, cnt, *tags):
        self.cnt = cnt; self.tags = set(tags)

def I(text, tag=None): return Ins(text, tag)
def VM(*tags): return Wait("vm", *tags)
def LG(*tags): return Wait("lgkm", *tags)

def flatten(L):
    out = []
    for x in L:
        if isinstance(x, (list, tuple)): out.extend(flatten(x))
        elif isinstance(x, str): out.append(Ins(x))
        else: out.append(x)
    return out

def weave(main, fill, first=0, last=None, anchor=lambda x: isinstance(x, Ins) and x.kind == "mfma"):
    main = flatten(main)
    idx = [i for i, x in enumerate(main) if anchor(x)]
    if last is None: last = len(idx) - 1
    sel = idx[first:last + 1]
    n = len(sel); m = len(fill)
    out = []; k = 0; j = 0
    selset = {i: q for q, i in enumerate(sel)}
    for i, x in enumerate(main):
        out.append(x)
        if i in selset:
            q = selset[i]
            upto = (m * (q + 1) + n - 1) // n if q < n - 1 else m
            upto = min(upto, m)
            while k < upto:
                out.append(fill[k]); k += 1
    assert k == m
    return flatten(out)

def resolve_waits(code):
    out = []; vm = []; lg = []
    for x in code:
        if isinstance(x, Wait):
            q = vm if x.cnt == "vm" else lg
            pos = -1
            for i, t in enumerate(q):
                if t in x.tags or "*" in x.tags: pos = i
            if pos < 0: continue
            n = len(q) - 1 - pos
            mx = 63 if x.cnt == "vm" else 15
            if n > mx:
                n = mx
            del q[:len(q) - n]
            txt = f"s_waitcnt vmcnt({n})" if x.cnt == "vm" else f"s_waitcnt lgkmcnt({n})"
            if out and out[-1].op == "s_waitcnt" and (("vmcnt" in out[-1].text) != ("vmcnt" in txt)) and not ("vmcnt" in out[-1].text and "lgkmcnt" in out[-1].text):
                a = out.pop()
                p = a.text.split()[1], txt.split()[1]
                p = sorted(p, key=lambda s: 0 if "vm" in s else 1)
                txt = "s_waitcnt " + " ".join(p)
            out.append(Ins(txt))
            continue
        if x.kind in ("vload", "vstore", "dma", "vatomic", "vmisc"):
            vm.append(x.tag)
        elif x.kind in ("dsread", "dswrite"):
            lg.append(x.tag)
        elif x.kind == "smem":
            lg.append("smem")
        elif x.op == "s_waitcnt":
            m = re.search(r"vmcnt\((\d+)\)", x.text)
            if m:
                n = int(m.group(1)); del vm[:max(0, len(vm) - n)]
            m = re.search(r"lgkmcnt\((\d+)\)", x.text)
            if m:
                n = int(m.group(1)); del lg[:max(0, len(lg) - n)]
        out.append(x)
    return out

VALU_KINDS = ("valu", "trans", "permlane", "readlane")
def isv(r): return r[0] in ("v", "a")
def iss(r): return r[0] in ("s", "vcc")

def need(p, c):
    n = 0
    pv = p.kind in VALU_KINDS
    cv = c.kind in VALU_KINDS
    cmem = c.kind in ("vload", "vstore", "dma", "vatomic", "dsread", "dswrite")
    if pv:
        vd = {r for r in p.defs if isv(r)}
        sd = {r for r in p.defs if iss(r)}
        if c.kind == "mfma" and vd & c.uses: n = max(n, 2)
        if p.kind == "trans" and (cv or cmem) and c.kind != "trans" and vd & c.uses: n = max(n, 1)
        if p.kind == "trans" and c.kind == "trans" and vd & c.uses: n = max(n, 1)
        if c.kind == "readlane" and vd & c.uses: n = max(n, 1)
        if c.kind == "permlane" and vd & c.uses: n = max(n, 2)
        if c.dppsrc and vd & c.dppsrc: n = max(n, 2)
        if sd & c.uses:
            if c.kind == "readlane" or c.op.startswith("v_writelane"): n = max(n, 4)
            elif cv or c.kind == "mfma": n = max(n, 2)
            elif cmem: n = max(n, 5)
            else: n = max(n, 1)
    if p.kind == "mfma":
        big = 12 if p.passes == 8 else 8
        if c.kind == "mfma":
            if p.defs & c.srcAB: n = max(n, big)
            if p.defs & c.srcC:
                if not (p.defs == c.srcC and p.op == c.op): n = max(n, big - 2)
            elif p.defs & c.defs: n = max(n, big)
        elif cv or cmem:
            if p.defs & (c.uses | c.defs): n = max(n, big)
        if cv and (p.srcC & c.defs): n = max(n, 7 if p.passes == 8 else 3)
    if p.kind == "salu" and ("m0", 0) in p.defs and c.kind == "dma": n = max(n, 1)
    if p.data and (p.data & c.defs):
        n = max(n, 2 if (cv or c.kind == "mfma") else 1)
    return n

def fix_hazards(code, window=24):
    out = []
    for c in code:
        if c.kind != "label":
            dist = 0; req = 0
            for p in reversed(out[-window:]):
                r = need(p, c) - dist
                if r > req: req = r
                dist += p.states()
                if dist > 20: break
            while req > 0:
                k = min(req, 8)
                out.append(Ins(f"s_nop {k-1}")); req -= k
        out.append(c)
    labels = {x.label: i for i, x in enumerate(out) if x.kind == "label"}
    changed = True
    while changed:
        changed = False
        labels = {x.label: i for i, x in enumerate(out) if x.kind == "label"}
        for i, b in enumerate(out):
            if b.kind == "branch" and b.target in labels:
                t = labels[b.target]
                pre = out[max(0, i - window):i + 1]
                post = out[t + 1:t + 1 + window]
                seq = list(pre); worst = 0; dpost = 0
                for c in post:
                    if c.kind == "label": continue
                    dist = dpost
                    for p in reversed(pre):
                        r = need(p, c) - dist
                        worst = max(worst, r)
                        dist += p.states()
                        if dist > 20: break
                    dpost += c.states()
                    if dpost > 20 or c.op in ("s_branch", "s_endpgm"): break
                if worst > 0:
                    out.insert(t + 1, Ins(f"s_nop {min(worst,8)-1}"))
                    changed = True
                    break
    return out

def finalize(code):
    code = flatten(code)
    code = resolve_waits(code)
    code = fix_hazards(code)
    lines = []
    for x in code:
        lines.append(x.text if x.kind == "label" else "    " + x.text)
    return "\n".join(lines) + "\n"

def srd(sd, sbase, nbytes):
    return [f"s_mov_b32 s{sd}, s{sbase}", f"s_mov_b32 s{sd+1}, s{sbase+1}",
            f"s_mov_b32 s{sd+2}, {nbytes}", f"s_mov_b32 s{sd+3}, 0x20000"]

def f2u(f):
    import struct
    return "0x%08x" % struct.unpack("<I", struct.pack("<f", f))[0]

def kernel_text(name, body):
    return f".globl {name}\n.p2align 8\n.type {name},@function\n{name}:\n" + body

def descriptor(name, vgpr, accum, sgpr=96):
    return f""".p2align 6
.amdhsa_kernel {name}
  .amdhsa_next_free_vgpr {vgpr}
  .amdhsa_next_free_sgpr {sgpr}
  .amdhsa_accum_offset {accum}
  .amdhsa_group_segment_fixed_size 0
  .amdhsa_kernarg_size 88
  .amdhsa_user_sgpr_count 2
  .amdhsa_user_sgpr_kernarg_segment_ptr 1
  .amdhsa_system_sgpr_workgroup_id_x 1
  .amdhsa_float_denorm_mode_32 3
.end_amdhsa_kernel
"""
```

```python
from asmgen import *
from layout import *

def gen_k0(name="ln_kernel"):
    c = []
    A = c.append
    A("s_cmp_ge_u32 s2, 256"); A(f"s_cbranch_scc1 L_{name}_end")
    A("s_load_dwordx2 s[4:5], s[0:1], 0")
    A("s_load_dwordx2 s[6:7], s[0:1], 80")
    A("v_lshrrev_b32 v1, 4, v0")
    A("v_and_b32 v2, 15, v0")
    A("s_lshl_b32 s3, s2, 3")
    A("v_add_u32 v1, s3, v1")
    A("s_movk_i32 s16, 1152")
    A("v_mul_lo_u32 v3, v1, s16")
    A("v_lshl_add_u32 v3, v2, 3, v3")
    A("s_waitcnt lgkmcnt(0)")
    c += srd(8, 4, S*D*2)
    c += srd(12, 6, XF_OFF + XF_SZ)
    for i in range(9):
        A(I(f"buffer_load_dwordx2 v[{10+2*i}:{11+2*i}], v3, s[8:11], 0 offen offset:{i*128}", "x"))
    A("v_lshrrev_b32 v4, 5, v1")
    A("v_mul_u32_u24 v4, 36, v4")
    A("v_lshrrev_b32 v5, 2, v2")
    A("v_add_u32 v4, v4, v5")
    A("v_lshlrev_b32 v4, 10, v4")
    A("v_and_b32 v5, 31, v1")
    A("v_lshl_add_u32 v4, v5, 4, v4")
    A("v_bfe_u32 v5, v2, 1, 1")
    A("v_lshl_add_u32 v4, v5, 9, v4")
    A("v_and_b32 v5, 1, v2")
    A("v_lshl_add_u32 v4, v5, 3, v4")
    A(VM("x"))
    for i in range(18):
        A(f"v_lshlrev_b32 v{32+2*i}, 16, v{10+i}")
        A(f"v_and_b32 v{33+2*i}, 0xffff0000, v{10+i}")
    A("v_add_f32 v6, v32, v33")
    A("v_add_f32 v7, v34, v35")
    for i in range(4, 36, 2):
        A(f"v_add_f32 v6, v6, v{32+i}")
        A(f"v_add_f32 v7, v7, v{33+i}")
    A("v_add_f32 v6, v6, v7")
    def rowsum(r):
        for m in ("quad_perm:[1,0,3,2]", "quad_perm:[2,3,0,1]", "row_half_mirror", "row_mirror"):
            A(f"v_add_f32_dpp v{r}, v{r}, v{r} {m} row_mask:0xf bank_mask:0xf")
    rowsum(6)
    A(f"v_mul_f32 v6, {f2u(1.0/576)}, v6")
    A("v_mov_b32 v7, 0"); A("v_mov_b32 v8, 0")
    for i in range(0, 36, 2):
        A(f"v_sub_f32 v28, v{32+i}, v6")
        A(f"v_sub_f32 v29, v{33+i}, v6")
        A("v_fmac_f32 v7, v28, v28")
        A("v_fmac_f32 v8, v29, v29")
    A("v_add_f32 v7, v7, v8")
    rowsum(7)
    A(f"v_mul_f32 v7, {f2u(1.0/576)}, v7")
    A("v_cvt_pk_bf16_f32 v8, v6, v7")
    A("v_lshlrev_b32 v6, 16, v8")
    A("v_and_b32 v7, 0xffff0000, v8")
    A(f"v_add_f32 v7, {f2u(1e-5)}, v7")
    A("v_cvt_pk_bf16_f32 v7, v7, v7")
    A("v_and_b32 v7, 0xffff0000, v7")
    A("v_sqrt_f32 v7, v7")
    A("v_cvt_pk_bf16_f32 v7, v7, v7")
    A("v_and_b32 v7, 0xffff0000, v7")
    A("v_rcp_f32 v7, v7")
    for i in range(18):
        a, b = 32+2*i, 33+2*i
        A(f"v_sub_f32 v{a}, v{a}, v6")
        A(f"v_sub_f32 v{b}, v{b}, v6")
        A(f"v_cvt_pk_bf16_f32 v28, v{a}, v{b}")
        A(f"v_lshlrev_b32 v{a}, 16, v28")
        A(f"v_and_b32 v{b}, 0xffff0000, v28")
        A(f"v_mul_f32 v{a}, v{a}, v7")
        A(f"v_mul_f32 v{b}, v{b}, v7")
        A(f"v_cvt_pk_bf16_f32 v{10+i}, v{a}, v{b}")
    A("s_mov_b32 s16, 0")
    for i in range(9):
        A(f"buffer_store_dwordx2 v[{10+2*i}:{11+2*i}], v4, s[12:15], s16 offen")
        if i < 8: A("s_add_u32 s16, s16, 4096")
    A(f"L_{name}_end:")
    A("s_endpgm")
    return kernel_text(name, finalize(c)), descriptor(name, 72, 72, 32), f"; @launch kernel={name} grid=(256,1,1) block=(128,1,1) lds=0"
```

```python
S, D, FH = 2048, 576, 2304
XF_OFF   = 0
XF_SZ    = S*D*2
Z1_OFF   = 0x0240000 + 0x10000
Z1_OFF   = 4 << 20
Z1_SZ    = S*FH*2
ZF_OFF   = 16 << 20
ZF_SZ    = S*FH*2
AU_OFF   = 32 << 20
AU_SZ    = S*2880*2
PQT_OFF  = 48 << 20
PQT_SZ   = S*D*2
KVP_OFF  = 52 << 20
KVP_SZ   = 8*32*1520
ST_OFF   = 53 << 20
ST_SZ    = 8*8*32*256
KW_OFF   = 54 << 20
KW_SZ    = D*D*2
WS_SZ    = 268435456
EI_OFF   = 56 << 20
EI_SZ    = 32*73728
```

```python
import sys, importlib
from asmgen import *
HDR = open("parallel_sum__linear_attn_block__mixer_gmlp__prompt.s.ref").read().split("; Override launch")[0]
def build(kernels, path):
    txt = HDR
    for k in kernels: txt += k[2] + "\n"
    txt += '.amdgcn_target "amdgcn-amd-amdhsa--gfx950"\n.text\n'
    for k in kernels: txt += k[0]
    txt += 'L_text_end:\n.section .rodata,"a"\n'
    for k in kernels: txt += k[1]
    open(path, "w").write(txt)
if __name__ == "__main__":
    from k0 import gen_k0
    ks = [gen_k0()]
    for mod, fn in (("k1", "gen_k1"), ("k2", "gen_k2"), ("k3", "gen_k3")):
        try:
            m = importlib.import_module(mod)
        except ImportError:
            continue
        ks.append(getattr(m, fn)())
    out = sys.argv[1] if len(sys.argv) > 1 else "parallel_sum__linear_attn_block__mixer_gmlp__prompt.s"
    build(ks, out)
    print("wrote", out)
```

```python
import re

TRANS = ("v_exp_f32", "v_log_f32", "v_rcp_f32", "v_rsq_f32", "v_sqrt_f32", "v_sin_f32", "v_cos_f32", "v_rcp_iflag_f32")

_reg_re = re.compile(r"^(-?)(?:abs\()?([vas])(\d+)\)?$")
_rng_re = re.compile(r"^(-?)(?:abs\()?([vas])\[(\d+):(\d+)\]\)?$")

def parse_regs(tok):
    tok = tok.strip()
    if tok.startswith("|") and tok.endswith("|"):
        tok = tok[1:-1]
    if tok.startswith("-|") and tok.endswith("|"):
        tok = tok[2:-1]
    m = _reg_re.match(tok)
    if m:
        return [(m.group(2), int(m.group(3)))]
    m = _rng_re.match(tok)
    if m:
        return [(m.group(2), i) for i in range(int(m.group(3)), int(m.group(4)) + 1)]
    if tok == "vcc": return [("vcc", 0)]
    if tok == "exec": return [("exec", 0)]
    if tok == "m0": return [("m0", 0)]
    return []

class Ins:
    __slots__ = ("text", "op", "defs", "uses", "kind", "tag", "srcC", "srcAB", "passes", "wait", "label", "target", "data", "dppsrc")
    def __init__(self, text, tag=None):
        self.text = text.strip()
        self.tag = tag
        self.wait = None
        self.label = None
        self.target = None
        self.srcC = None; self.srcAB = None; self.passes = 0; self.data = None; self.dppsrc = None
        self.defs = set(); self.uses = set(); self.kind = "other"
        t = self.text.split(";")[0].strip()
        if t.endswith(":"):
            self.label = t[:-1]; self.op = "label"; self.kind = "label"; return
        parts = t.split(None, 1)
        self.op = op = parts[0]
        rest = parts[1] if len(parts) > 1 else ""
        ops = []; cur = ""; depth = 0
        for ch in rest:
            if ch in "[(": depth += 1
            if ch in "])": depth -= 1
            if ch == "," and depth == 0:
                ops.append(cur.strip()); cur = ""
            else:
                cur += ch
        if cur.strip(): ops.append(cur.strip())
        mods = ""
        if ops:
            l = ops[-1].split(None, 1)
            if len(l) > 1:
                ops[-1] = l[0]; mods = l[1]
        R = [parse_regs(o) for o in ops]
        flat = lambda L: set(x for r in L for x in r)
        if op.startswith("v_mfma"):
            self.kind = "mfma"
            self.passes = 8 if "32x32" in op else 4
            self.defs = set(R[0]); self.srcAB = set(R[1]) | set(R[2]); self.srcC = set(R[3])
            self.uses = self.srcAB | self.srcC
        elif op.startswith("v_"):
            self.kind = "trans" if op.replace("_e32", "").replace("_e64", "") in TRANS else "valu"
            if op.startswith("v_cmp"):
                self.defs = set(R[0]); self.uses = flat(R[1:])
                assert not op.startswith("v_cmpx")
            elif op.startswith("v_permlane") and "swap" in op:
                self.defs = flat(R); self.uses = flat(R); self.kind = "permlane"
            elif op.startswith(("v_add_co", "v_sub_co", "v_addc_co", "v_subb_co", "v_subrev_co")):
                self.defs = set(R[0]) | set(R[1]); self.uses = flat(R[2:])
            elif op.startswith(("v_fmac", "v_dot2c", "v_pk_fmac")):
                self.defs = set(R[0]); self.uses = flat(R)
            elif op.startswith(("v_readfirstlane", "v_readlane")):
                self.defs = set(R[0]); self.uses = flat(R[1:]); self.kind = "readlane"
            elif op.startswith("v_writelane"):
                self.defs = set(R[0]); self.uses = flat(R)
            elif op == "v_nop":
                pass
            else:
                self.defs = set(R[0]); self.uses = flat(R[1:])
            if "_dpp" in op:
                self.dppsrc = set(R[1]); self.uses |= set(R[0])
            if "d16" in op: self.uses |= set(R[0])
        elif op.startswith("buffer_") or op.startswith("global_"):
            islds = re.search(r"\blds\b", mods) is not None
            if "load" in op and not islds:
                self.kind = "vload"; self.defs = set(R[0]); self.uses = flat(R[1:])
                if "d16" in op: self.uses |= set(R[0])
            elif "load" in op:
                self.kind = "dma"; self.uses = flat(R) | {("m0", 0)}
            elif "store" in op:
                self.kind = "vstore"; self.uses = flat(R)
                if op.endswith("x4") or op.endswith("x3"):
                    self.data = set(R[0]) if op.startswith("buffer_") else set(R[1])
            elif "atomic" in op:
                self.kind = "vatomic"; self.uses = flat(R)
                if re.search(r"\bsc0\b", mods): self.defs = set(R[0])
            else:
                self.kind = "vmisc"
        elif op.startswith("ds_"):
            if op.startswith(("ds_read", "ds_bpermute", "ds_permute", "ds_swizzle")):
                self.kind = "dsread"; self.defs = set(R[0]); self.uses = flat(R[1:])
            else:
                self.kind = "dswrite"; self.uses = flat(R)
        elif op.startswith("s_"):
            self.kind = "salu"
            if op.startswith(("s_cbranch", "s_branch")):
                self.kind = "branch"; self.target = ops[0]
            elif op.startswith(("s_waitcnt", "s_barrier", "s_nop", "s_setprio", "s_sleep", "s_endpgm")):
                self.kind = "misc"
            elif op.startswith(("s_cmp", "s_bitcmp")):
                self.uses = flat(R)
            elif op.startswith(("s_load", "s_memtime", "s_memrealtime", "s_buffer_load")):
                self.kind = "smem"; self.defs = set(R[0]); self.uses = flat(R[1:])
            elif "saveexec" in op:
                self.defs = set(R[0]) | {("exec", 0)}; self.uses = flat(R[1:]) | {("exec", 0)}
            else:
                self.defs = set(R[0]); self.uses = flat(R[1:])
                if op in ("s_addk_i32", "s_mulk_i32"): self.uses |= set(R[0])
        else:
            raise ValueError("unknown op: " + text)
    def states(self):
        if self.op == "s_nop":
            return int(self.text.split()[1], 0) + 1
        if self.kind == "label": return 0
        return 1

class Wait:
    def __init__(self, cnt, *tags):
        self.cnt = cnt; self.tags = set(tags)

def I(text, tag=None): return Ins(text, tag)
def VM(*tags): return Wait("vm", *tags)
def LG(*tags): return Wait("lgkm", *tags)

def flatten(L):
    out = []
    for x in L:
        if isinstance(x, (list, tuple)): out.extend(flatten(x))
        elif isinstance(x, str): out.append(Ins(x))
        else: out.append(x)
    return out

def weave(main, fill, first=0, last=None, anchor=lambda x: isinstance(x, Ins) and x.kind == "mfma"):
    main = flatten(main)
    idx = [i for i, x in enumerate(main) if anchor(x)]
    if last is None: last = len(idx) - 1
    sel = idx[first:last + 1]
    n = len(sel); m = len(fill)
    out = []; k = 0; j = 0
    selset = {i: q for q, i in enumerate(sel)}
    for i, x in enumerate(main):
        out.append(x)
        if i in selset:
            q = selset[i]
            upto = (m * (q + 1) + n - 1) // n if q < n - 1 else m
            upto = min(upto, m)
            while k < upto:
                out.append(fill[k]); k += 1
    assert k == m
    return flatten(out)

def merge(a, b):
    out = []; i = j = 0
    na, nb = len(a), len(b)
    while i < na or j < nb:
        if j >= nb or (i < na and i * nb <= j * na):
            out.append(a[i]); i += 1
        else:
            out.append(b[j]); j += 1
    return out

def resolve_waits(code):
    out = []; vm = []; lg = []
    for x in code:
        if isinstance(x, Wait):
            q = vm if x.cnt == "vm" else lg
            pos = -1
            for i, t in enumerate(q):
                if t in x.tags or "*" in x.tags: pos = i
            if pos < 0: continue
            n = len(q) - 1 - pos
            mx = 63 if x.cnt == "vm" else 15
            if n > mx:
                n = mx
            del q[:len(q) - n]
            txt = f"s_waitcnt vmcnt({n})" if x.cnt == "vm" else f"s_waitcnt lgkmcnt({n})"
            if out and out[-1].op == "s_waitcnt" and (("vmcnt" in out[-1].text) != ("vmcnt" in txt)) and not ("vmcnt" in out[-1].text and "lgkmcnt" in out[-1].text):
                a = out.pop()
                p = a.text.split()[1], txt.split()[1]
                p = sorted(p, key=lambda s: 0 if "vm" in s else 1)
                txt = "s_waitcnt " + " ".join(p)
            out.append(Ins(txt))
            continue
        if "; cond" in x.text:
            pass
        elif x.kind in ("vload", "vstore", "dma", "vatomic", "vmisc"):
            vm.append(x.tag)
        elif x.kind in ("dsread", "dswrite"):
            lg.append(x.tag)
        elif x.kind == "smem":
            lg.append("smem")
        elif x.op == "s_waitcnt":
            m = re.search(r"vmcnt\((\d+)\)", x.text)
            if m:
                n = int(m.group(1)); del vm[:max(0, len(vm) - n)]
            m = re.search(r"lgkmcnt\((\d+)\)", x.text)
            if m:
                n = int(m.group(1)); del lg[:max(0, len(lg) - n)]
        out.append(x)
    return out

VALU_KINDS = ("valu", "trans", "permlane", "readlane")
def isv(r): return r[0] in ("v", "a")
def iss(r): return r[0] in ("s", "vcc")

def need(p, c):
    n = 0
    pv = p.kind in VALU_KINDS
    cv = c.kind in VALU_KINDS
    cmem = c.kind in ("vload", "vstore", "dma", "vatomic", "dsread", "dswrite")
    if pv:
        vd = {r for r in p.defs if isv(r)}
        sd = {r for r in p.defs if iss(r)}
        if c.kind == "mfma" and vd & c.uses: n = max(n, 2)
        if p.kind == "trans" and (cv or cmem) and c.kind != "trans" and vd & c.uses: n = max(n, 1)
        if p.kind == "trans" and c.kind == "trans" and vd & c.uses: n = max(n, 1)
        if c.kind == "readlane" and vd & c.uses: n = max(n, 1)
        if c.kind == "permlane" and vd & c.uses: n = max(n, 2)
        if c.dppsrc and vd & c.dppsrc: n = max(n, 2)
        if sd & c.uses:
            if c.kind == "readlane" or c.op.startswith("v_writelane"): n = max(n, 4)
            elif cv or c.kind == "mfma": n = max(n, 2)
            elif cmem: n = max(n, 5)
            else: n = max(n, 1)
    if p.kind == "mfma":
        big = 12 if p.passes == 8 else 8
        if c.kind == "mfma":
            if p.defs & c.srcAB: n = max(n, big)
            if p.defs & c.srcC:
                if not (p.defs == c.srcC and p.op == c.op): n = max(n, big - 2)
            elif p.defs & c.defs: n = max(n, big)
        elif cv or cmem:
            if p.defs & (c.uses | c.defs): n = max(n, big)
        if cv and (p.srcC & c.defs): n = max(n, 7 if p.passes == 8 else 3)
    if p.kind == "salu" and ("m0", 0) in p.defs and c.kind == "dma": n = max(n, 1)
    if p.data and (p.data & c.defs):
        n = max(n, 2 if (cv or c.kind == "mfma") else 1)
    return n

def fix_hazards(code, window=24):
    out = []
    for c in code:
        if c.kind != "label":
            dist = 0; req = 0
            for p in reversed(out[-window:]):
                r = need(p, c) - dist
                if r > req: req = r
                dist += p.states()
                if dist > 20: break
            while req > 0:
                k = min(req, 8)
                out.append(Ins(f"s_nop {k-1}")); req -= k
        out.append(c)
    labels = {x.label: i for i, x in enumerate(out) if x.kind == "label"}
    changed = True
    while changed:
        changed = False
        labels = {x.label: i for i, x in enumerate(out) if x.kind == "label"}
        for i, b in enumerate(out):
            if b.kind == "branch" and b.target in labels:
                t = labels[b.target]
                pre = out[max(0, i - window):i + 1]
                post = out[t + 1:t + 1 + window]
                seq = list(pre); worst = 0; dpost = 0
                for c in post:
                    if c.kind == "label": continue
                    dist = dpost
                    for p in reversed(pre):
                        r = need(p, c) - dist
                        worst = max(worst, r)
                        dist += p.states()
                        if dist > 20: break
                    dpost += c.states()
                    if dpost > 20 or c.op in ("s_branch", "s_endpgm"): break
                if worst > 0:
                    out.insert(t + 1, Ins(f"s_nop {min(worst,8)-1}"))
                    changed = True
                    break
    return out

def finalize(code):
    code = flatten(code)
    code = resolve_waits(code)
    code = fix_hazards(code)
    lines = []
    for x in code:
        lines.append(x.text if x.kind == "label" else "    " + x.text)
    return "\n".join(lines) + "\n"

def srd(sd, sbase, nbytes):
    return [f"s_mov_b32 s{sd}, s{sbase}", f"s_mov_b32 s{sd+1}, s{sbase+1}",
            f"s_mov_b32 s{sd+2}, {nbytes}", f"s_mov_b32 s{sd+3}, 0x20000"]

def f2u(f):
    import struct
    return "0x%08x" % struct.unpack("<I", struct.pack("<f", f))[0]

def kernel_text(name, body):
    return f".globl {name}\n.p2align 8\n.type {name},@function\n{name}:\n" + body

def descriptor(name, vgpr, accum, sgpr=96):
    return f""".p2align 6
.amdhsa_kernel {name}
  .amdhsa_next_free_vgpr {vgpr}
  .amdhsa_next_free_sgpr {sgpr}
  .amdhsa_accum_offset {accum}
  .amdhsa_group_segment_fixed_size 0
  .amdhsa_kernarg_size 88
  .amdhsa_user_sgpr_count 2
  .amdhsa_user_sgpr_kernarg_segment_ptr 1
  .amdhsa_system_sgpr_workgroup_id_x 1
  .amdhsa_float_denorm_mode_32 3
.end_amdhsa_kernel
"""
```

```python
from asmgen import *
from layout import *
import os

def gen_k0(name="ln_kernel"):
    c = []
    A = c.append
    A("s_cmp_ge_u32 s2, 256"); A(f"s_cbranch_scc1 L_{name}_end")
    A("s_load_dwordx4 s[4:7], s[0:1], 0")
    A("s_load_dwordx2 s[20:21], s[0:1], 80")
    A("s_load_dwordx2 s[22:23], s[0:1], 32")
    A("v_readfirstlane_b32 s24, v0")
    A("s_cmp_ge_u32 s24, 128"); A(f"s_cbranch_scc1 L_{name}_aux")
    A("v_lshrrev_b32 v1, 4, v0")
    A("v_and_b32 v2, 15, v0")
    A("s_lshl_b32 s3, s2, 3")
    A("v_add_u32 v1, s3, v1")
    A("v_mul_u32_u24 v3, 1152, v1")
    A("v_lshl_add_u32 v3, v2, 3, v3")
    A("s_waitcnt lgkmcnt(0)")
    c += srd(8, 4, S*D*2)
    for i in range(9):
        A(I(f"buffer_load_dwordx2 v[{10+2*i}:{11+2*i}], v3, s[8:11], 0 offen offset:{i*128}", "x"))
    c += srd(12, 20, 64 << 20)
    A("v_lshrrev_b32 v4, 5, v1")
    A("v_mul_u32_u24 v4, 36, v4")
    A("v_lshrrev_b32 v5, 2, v2")
    A("v_add_u32 v4, v4, v5")
    A("v_lshlrev_b32 v4, 10, v4")
    A("v_and_b32 v5, 31, v1")
    A("v_lshl_add_u32 v4, v5, 4, v4")
    A("v_bfe_u32 v5, v2, 1, 1")
    A("v_lshl_add_u32 v4, v5, 9, v4")
    A("v_and_b32 v5, 1, v2")
    A("v_lshl_add_u32 v4, v5, 3, v4")
    A(VM("x"))
    for i in range(18):
        A(f"v_lshlrev_b32 v{32+2*i}, 16, v{10+i}")
        A(f"v_and_b32 v{33+2*i}, 0xffff0000, v{10+i}")
    A("v_add_f32 v6, v32, v33")
    A("v_add_f32 v7, v34, v35")
    for i in range(4, 36, 2):
        A(f"v_add_f32 v6, v6, v{32+i}")
        A(f"v_add_f32 v7, v7, v{33+i}")
    A("v_add_f32 v6, v6, v7")
    def rowsum(r):
        for m in ("quad_perm:[1,0,3,2]", "quad_perm:[2,3,0,1]", "row_half_mirror", "row_mirror"):
            A(f"v_add_f32_dpp v{r}, v{r}, v{r} {m} row_mask:0xf bank_mask:0xf")
    rowsum(6)
    A(f"v_mul_f32 v6, {f2u(1.0/576)}, v6")
    A("v_mov_b32 v7, 0"); A("v_mov_b32 v8, 0")
    for i in range(0, 36, 2):
        A(f"v_sub_f32 v28, v{32+i}, v6")
        A(f"v_sub_f32 v29, v{33+i}, v6")
        A("v_fmac_f32 v7, v28, v28")
        A("v_fmac_f32 v8, v29, v29")
    A("v_add_f32 v7, v7, v8")
    rowsum(7)
    A(f"v_mul_f32 v7, {f2u(1.0/576)}, v7")
    A("v_cvt_pk_bf16_f32 v8, v6, v7")
    A("v_lshlrev_b32 v6, 16, v8")
    A("v_and_b32 v7, 0xffff0000, v8")
    A(f"v_add_f32 v7, {f2u(1e-5)}, v7")
    A("v_cvt_pk_bf16_f32 v7, v7, v7")
    A("v_and_b32 v7, 0xffff0000, v7")
    A("v_sqrt_f32 v7, v7")
    A("v_cvt_pk_bf16_f32 v7, v7, v7")
    A("v_and_b32 v7, 0xffff0000, v7")
    A("v_rcp_f32 v7, v7")
    A(f"s_mov_b32 s16, {XF_OFF}")
    for i in range(18):
        a, b = 32+2*i, 33+2*i
        A(f"v_sub_f32 v{a}, v{a}, v6")
        A(f"v_sub_f32 v{b}, v{b}, v6")
        A(f"v_cvt_pk_bf16_f32 v28, v{a}, v{b}")
        A(f"v_lshlrev_b32 v{a}, 16, v28")
        A(f"v_and_b32 v{b}, 0xffff0000, v28")
        A(f"v_mul_f32 v{a}, v{a}, v7")
        A(f"v_mul_f32 v{b}, v{b}, v7")
        A(f"v_cvt_pk_bf16_f32 v{10+i}, v{a}, v{b}")
        if i & 1:
            A(f"buffer_store_dwordx2 v[{9+i}:{10+i}], v4, s[12:15], s16 offen")
            if i < 17: A("s_add_u32 s16, s16, 4096")
    A("s_endpgm")
    A(f"L_{name}_aux:")
    A("v_subrev_u32 v0, 128, v0")
    A("s_lshr_b32 s25, s2, 3"); A("s_and_b32 s26, s2, 7")
    A("v_and_b32 v1, 7, v0"); A("v_lshrrev_b32 v2, 3, v0")
    for p in range(4):
        A(f"v_lshl_add_u32 v3, v1, 2, {p}")
        A(f"v_subrev_u32 v{4+p}, 19, v3")
        A(f"v_cmp_gt_u32 vcc, 9, v{4+p}"); A(f"v_cndmask_b32 v{4+p}, 0, v{4+p}, vcc")
        A("v_add_u32 v8, 567, v3"); A("v_cmp_gt_u32 vcc, 18, v3"); A(f"v_cndmask_b32 v{4+p}, v{4+p}, v8, vcc")
        A("v_add_u32 v8, 288, v3"); A("v_cmp_gt_u32 vcc, 9, v3"); A(f"v_cndmask_b32 v{4+p}, v{4+p}, v8, vcc")
        A(f"v_lshlrev_b32 v{4+p}, 2, v{4+p}")
    A("v_mul_u32_u24 v8, 3456, v2")
    for p in range(4): A(f"v_add_u32 v{4+p}, v{4+p}, v8")
    A(f"s_mul_i32 s27, s26, {72*3456}"); A("s_mul_i32 s28, s25, 36"); A("s_add_u32 s27, s27, s28")
    A("s_waitcnt lgkmcnt(0)")
    c += srd(8, 6, 576*1728*2)
    for it in range(5):
        for p in range(4):
            A(I(f"buffer_load_dword v{16+4*it+p}, v{4+p}, s[8:11], s27 offen", ("e", it)))
        if it < 4: A(f"s_add_u32 s27, s27, {16*3456}")
    c += srd(12, 20, 64 << 20)
    c += srd(16, 22, 576*4608*2)
    A("v_and_b32 v9, 63, v0"); A("v_lshlrev_b32 v9, 4, v9"); A("v_lshrrev_b32 v10, 6, v0")
    A("v_mul_u32_u24 v10, 9216, v10"); A("v_add_u32 v9, v9, v10")
    A("s_lshr_b32 s28, s26, 1"); A("s_lshl_b32 s28, s28, 10"); A(f"s_mul_i32 s29, s25, {18*9216}"); A("s_add_u32 s28, s28, s29"); A(f"s_add_u32 s28, s28, {FH*2}")
    if os.environ.get("NOPF0") != "1":
        for i in range(9):
            A(I(f"buffer_load_dwordx4 v[{40+4*(i%4)}:{43+4*(i%4)}], v9, s[16:19], s28 offen", "pf"))
            A("s_add_u32 s28, s28, 18432")
    for i in range(4): A(f"v_mov_b32 v{12+i}, -1")
    A("v_lshlrev_b32 v11, 4, v0"); A("s_lshl_b32 s28, s2, 11"); A(f"s_add_u32 s28, s28, {ST_OFF}")
    A("buffer_store_dwordx4 v[12:15], v11, s[12:15], s28 offen")
    A("v_lshrrev_b32 v3, 3, v2"); A("v_lshlrev_b32 v3, 10, v3"); A("v_and_b32 v8, 7, v2"); A("v_lshl_add_u32 v3, v8, 6, v3")
    A("v_lshrrev_b32 v8, 2, v1"); A("v_lshl_add_u32 v3, v8, 9, v3"); A("v_and_b32 v8, 3, v1"); A("v_lshl_add_u32 v3, v8, 4, v3")
    A("v_mov_b32 v8, 0x40000000"); A("v_cmp_gt_u32 vcc, 8, v2"); A("v_cndmask_b32 v8, v8, v3, vcc")
    A("s_mul_i32 s27, s25, 73728"); A("s_mul_i32 s28, s26, 9216"); A("s_add_u32 s27, s27, s28"); A(f"s_add_u32 s27, s27, {EI_OFF}")
    for it in range(5):
        A(VM(("e", it)))
        A(f"buffer_store_dwordx4 v[{16+4*it}:{19+4*it}], v{3 if it < 4 else 8}, s[12:15], s27 offen")
        if it < 4: A("s_add_u32 s27, s27, 2048")
    A(f"L_{name}_end:")
    A("s_endpgm")
    return kernel_text(name, finalize(c)), descriptor(name, 72, 72, 40), f"; @launch kernel={name} grid=(256,1,1) block=(256,1,1) lds=0"
```

```python
from asmgen import *
from layout import *
import os

def gen_k0(name="ln_kernel"):
    c = []
    A = c.append
    A("s_cmp_ge_u32 s2, 256"); A(f"s_cbranch_scc1 L_{name}_end")
    A("s_load_dwordx4 s[4:7], s[0:1], 0")
    A("s_load_dwordx2 s[20:21], s[0:1], 80")
    A("s_load_dwordx2 s[22:23], s[0:1], 32")
    A("v_readfirstlane_b32 s24, v0")
    A("s_cmp_ge_u32 s24, 128"); A(f"s_cbranch_scc1 L_{name}_aux")
    A("v_lshrrev_b32 v1, 4, v0")
    A("v_and_b32 v2, 15, v0")
    A("s_lshl_b32 s3, s2, 3")
    A("v_add_u32 v1, s3, v1")
    A("v_mul_u32_u24 v3, 1152, v1")
    A("v_lshl_add_u32 v3, v2, 3, v3")
    A("s_waitcnt lgkmcnt(0)")
    c += srd(8, 4, S*D*2)
    for i in range(9):
        A(I(f"buffer_load_dwordx2 v[{10+2*i}:{11+2*i}], v3, s[8:11], 0 offen offset:{i*128}", "x"))
    c += srd(12, 20, 64 << 20)
    A("v_lshrrev_b32 v4, 5, v1")
    A("v_mul_u32_u24 v4, 36, v4")
    A("v_lshrrev_b32 v5, 2, v2")
    A("v_add_u32 v4, v4, v5")
    A("v_lshlrev_b32 v4, 10, v4")
    A("v_and_b32 v5, 31, v1")
    A("v_lshl_add_u32 v4, v5, 4, v4")
    A("v_bfe_u32 v5, v2, 1, 1")
    A("v_lshl_add_u32 v4, v5, 9, v4")
    A("v_and_b32 v5, 1, v2")
    A("v_lshl_add_u32 v4, v5, 3, v4")
    A(VM("x"))
    for i in range(18):
        A(f"v_lshlrev_b32 v{32+2*i}, 16, v{10+i}")
        A(f"v_and_b32 v{33+2*i}, 0xffff0000, v{10+i}")
    A("v_add_f32 v6, v32, v33")
    A("v_add_f32 v7, v34, v35")
    for i in range(4, 36, 2):
        A(f"v_add_f32 v6, v6, v{32+i}")
        A(f"v_add_f32 v7, v7, v{33+i}")
    A("v_add_f32 v6, v6, v7")
    def rowsum(r):
        for m in ("quad_perm:[1,0,3,2]", "quad_perm:[2,3,0,1]", "row_half_mirror", "row_mirror"):
            A(f"v_add_f32_dpp v{r}, v{r}, v{r} {m} row_mask:0xf bank_mask:0xf")
    rowsum(6)
    A(f"v_mul_f32 v6, {f2u(1.0/576)}, v6")
    A("v_mov_b32 v7, 0"); A("v_mov_b32 v8, 0")
    for i in range(0, 36, 2):
        A(f"v_sub_f32 v28, v{32+i}, v6")
        A(f"v_sub_f32 v29, v{33+i}, v6")
        A("v_fmac_f32 v7, v28, v28")
        A("v_fmac_f32 v8, v29, v29")
    A("v_add_f32 v7, v7, v8")
    rowsum(7)
    A(f"v_mul_f32 v7, {f2u(1.0/576)}, v7")
    A("v_cvt_pk_bf16_f32 v8, v6, v7")
    A("v_lshlrev_b32 v6, 16, v8")
    A("v_and_b32 v7, 0xffff0000, v8")
    A(f"v_add_f32 v7, {f2u(1e-5)}, v7")
    A("v_cvt_pk_bf16_f32 v7, v7, v7")
    A("v_and_b32 v7, 0xffff0000, v7")
    A("v_sqrt_f32 v7, v7")
    A("v_cvt_pk_bf16_f32 v7, v7, v7")
    A("v_and_b32 v7, 0xffff0000, v7")
    A("v_rcp_f32 v7, v7")
    A(f"s_mov_b32 s16, {XF_OFF}")
    for i in range(18):
        a, b = 32+2*i, 33+2*i
        A(f"v_sub_f32 v{a}, v{a}, v6")
        A(f"v_sub_f32 v{b}, v{b}, v6")
        A(f"v_cvt_pk_bf16_f32 v28, v{a}, v{b}")
        A(f"v_lshlrev_b32 v{a}, 16, v28")
        A(f"v_and_b32 v{b}, 0xffff0000, v28")
        A(f"v_mul_f32 v{a}, v{a}, v7")
        A(f"v_mul_f32 v{b}, v{b}, v7")
        A(f"v_cvt_pk_bf16_f32 v{10+i}, v{a}, v{b}")
        if i & 1:
            A(f"buffer_store_dwordx2 v[{9+i}:{10+i}], v4, s[12:15], s16 offen")
            if i < 17: A("s_add_u32 s16, s16, 4096")
    A("s_endpgm")
    A(f"L_{name}_aux:")
    A("v_subrev_u32 v0, 128, v0")
    A("s_lshr_b32 s25, s2, 3"); A("s_and_b32 s26, s2, 7")
    A("v_and_b32 v1, 7, v0"); A("v_lshrrev_b32 v2, 3, v0")
    for p in range(4):
        A(f"v_lshl_add_u32 v3, v1, 2, {p}")
        A(f"v_subrev_u32 v{4+p}, 19, v3")
        A(f"v_cmp_gt_u32 vcc, 9, v{4+p}"); A(f"v_cndmask_b32 v{4+p}, 0, v{4+p}, vcc")
        A("v_add_u32 v8, 567, v3"); A("v_cmp_gt_u32 vcc, 18, v3"); A(f"v_cndmask_b32 v{4+p}, v{4+p}, v8, vcc")
        A("v_add_u32 v8, 288, v3"); A("v_cmp_gt_u32 vcc, 9, v3"); A(f"v_cndmask_b32 v{4+p}, v{4+p}, v8, vcc")
        A(f"v_lshlrev_b32 v{4+p}, 2, v{4+p}")
    A("v_mul_u32_u24 v8, 3456, v2")
    for p in range(4): A(f"v_add_u32 v{4+p}, v{4+p}, v8")
    A(f"s_mul_i32 s27, s26, {72*3456}"); A("s_mul_i32 s28, s25, 36"); A("s_add_u32 s27, s27, s28")
    A("s_waitcnt lgkmcnt(0)")
    c += srd(8, 6, 576*1728*2)
    for it in range(5):
        for p in range(4):
            A(I(f"buffer_load_dword v{16+4*it+p}, v{4+p}, s[8:11], s27 offen", ("e", it)))
        if it < 4: A(f"s_add_u32 s27, s27, {16*3456}")
    c += srd(12, 20, 64 << 20)
    c += srd(16, 22, 576*4608*2)
    PF0 = int(os.environ.get("PF0", 1))
    A("v_and_b32 v9, 63, v0"); A("v_lshlrev_b32 v9, 4, v9"); A("v_lshrrev_b32 v10, 6, v0")
    A("v_mul_u32_u24 v10, 9216, v10"); A("v_add_u32 v9, v9, v10")
    A("s_lshr_b32 s28, s26, 1"); A("s_lshl_b32 s28, s28, 10"); A(f"s_mul_i32 s29, s25, {18*9216}"); A("s_add_u32 s28, s28, s29"); A(f"s_add_u32 s30, s28, {FH*2}")
    if PF0 >= 1:
        for i in range(9):
            A(I(f"buffer_load_dwordx4 v[{40+4*(i%4)}:{43+4*(i%4)}], v9, s[16:19], s30 offen", "pf"))
            A("s_add_u32 s30, s30, 18432")
    if int(os.environ.get("PFC", 0)):
        A("s_getpc_b64 s[32:33]"); A("s_and_b32 s32, s32, 0xffffff00"); A("s_mov_b32 s34, L_text_end-ln_kernel-4096"); A("s_mov_b32 s35, 0x20000")
        A("v_lshlrev_b32 v11, 4, v0"); A("s_mul_i32 s31, s25, 6144")
        for i in range(3):
            A(I(f"buffer_load_dwordx4 v[{56+4*i}:{59+4*i}], v11, s[32:35], s31 offen offset:{i*2048 % 4096}", "pf"))
            if i == 1: A("s_add_u32 s31, s31, 4096")
    if PF0 >= 2:
        for i in range(9):
            A(I(f"buffer_load_dwordx4 v[{40+4*(i%4)}:{43+4*(i%4)}], v9, s[16:19], s28 offen", "pf"))
            A("s_add_u32 s28, s28, 18432")
    if int(os.environ.get("PFT", 0)):
        A("s_lshl_b32 s31, s25, 21"); A("v_lshlrev_b32 v11, 14, v0")
        A(I("buffer_load_dword v60, v11, s[12:15], s31 offen", "pf"))
    for i in range(4): A(f"v_mov_b32 v{12+i}, -1")
    A("v_lshlrev_b32 v11, 4, v0"); A("s_lshl_b32 s28, s2, 11"); A(f"s_add_u32 s28, s28, {ST_OFF}")
    A("buffer_store_dwordx4 v[12:15], v11, s[12:15], s28 offen")
    A("v_lshrrev_b32 v3, 3, v2"); A("v_lshlrev_b32 v3, 10, v3"); A("v_and_b32 v8, 7, v2"); A("v_lshl_add_u32 v3, v8, 6, v3")
    A("v_lshrrev_b32 v8, 2, v1"); A("v_lshl_add_u32 v3, v8, 9, v3"); A("v_and_b32 v8, 3, v1"); A("v_lshl_add_u32 v3, v8, 4, v3")
    A("v_mov_b32 v8, 0x40000000"); A("v_cmp_gt_u32 vcc, 8, v2"); A("v_cndmask_b32 v8, v8, v3, vcc")
    A("s_mul_i32 s27, s25, 73728"); A("s_mul_i32 s28, s26, 9216"); A("s_add_u32 s27, s27, s28"); A(f"s_add_u32 s27, s27, {EI_OFF}")
    for it in range(5):
        A(VM(("e", it)))
        A(f"buffer_store_dwordx4 v[{16+4*it}:{19+4*it}], v{3 if it < 4 else 8}, s[12:15], s27 offen")
        if it < 4: A("s_add_u32 s27, s27, 2048")
    A(f"L_{name}_end:")
    A("s_endpgm")
    return kernel_text(name, finalize(c)), descriptor(name, 72, 72, 40), f"; @launch kernel={name} grid=(256,1,1) block=(256,1,1) lds=0"
```

```python
from asmgen import *
from layout import *
import os

def gen_k0(name="ln_kernel"):
    c = []
    A = c.append
    A("s_cmp_ge_u32 s2, 256"); A(f"s_cbranch_scc1 L_{name}_end")
    A("s_load_dwordx4 s[4:7], s[0:1], 0")
    A("s_load_dwordx2 s[20:21], s[0:1], 80")
    A("s_load_dwordx2 s[22:23], s[0:1], 32")
    A("v_readfirstlane_b32 s24, v0")
    A("s_cmp_ge_u32 s24, 128"); A(f"s_cbranch_scc1 L_{name}_aux")
    A("v_lshrrev_b32 v1, 4, v0")
    A("v_and_b32 v2, 15, v0")
    A("s_lshl_b32 s3, s2, 3")
    A("v_add_u32 v1, s3, v1")
    A("v_mul_u32_u24 v3, 1152, v1")
    A("v_lshl_add_u32 v3, v2, 3, v3")
    A("s_waitcnt lgkmcnt(0)")
    c += srd(8, 4, S*D*2)
    for i in range(9):
        A(I(f"buffer_load_dwordx2 v[{10+2*i}:{11+2*i}], v3, s[8:11], 0 offen offset:{i*128}", "x"))
    c += srd(12, 20, 64 << 20)
    A("v_lshrrev_b32 v4, 5, v1")
    A("v_mul_u32_u24 v4, 36, v4")
    A("v_lshrrev_b32 v5, 2, v2")
    A("v_add_u32 v4, v4, v5")
    A("v_lshlrev_b32 v4, 10, v4")
    A("v_and_b32 v5, 31, v1")
    A("v_lshl_add_u32 v4, v5, 4, v4")
    A("v_bfe_u32 v5, v2, 1, 1")
    A("v_lshl_add_u32 v4, v5, 9, v4")
    A("v_and_b32 v5, 1, v2")
    A("v_lshl_add_u32 v4, v5, 3, v4")
    A(VM("x"))
    for i in range(18):
        A(f"v_lshlrev_b32 v{32+2*i}, 16, v{10+i}")
        A(f"v_and_b32 v{33+2*i}, 0xffff0000, v{10+i}")
    A("v_add_f32 v6, v32, v33")
    A("v_add_f32 v7, v34, v35")
    for i in range(4, 36, 2):
        A(f"v_add_f32 v6, v6, v{32+i}")
        A(f"v_add_f32 v7, v7, v{33+i}")
    A("v_add_f32 v6, v6, v7")
    def rowsum(r):
        for m in ("quad_perm:[1,0,3,2]", "quad_perm:[2,3,0,1]", "row_half_mirror", "row_mirror"):
            A(f"v_add_f32_dpp v{r}, v{r}, v{r} {m} row_mask:0xf bank_mask:0xf")
    rowsum(6)
    A(f"v_mul_f32 v6, {f2u(1.0/576)}, v6")
    A("v_mov_b32 v7, 0"); A("v_mov_b32 v8, 0")
    for i in range(0, 36, 2):
        A(f"v_sub_f32 v28, v{32+i}, v6")
        A(f"v_sub_f32 v29, v{33+i}, v6")
        A("v_fmac_f32 v7, v28, v28")
        A("v_fmac_f32 v8, v29, v29")
    A("v_add_f32 v7, v7, v8")
    rowsum(7)
    A(f"v_mul_f32 v7, {f2u(1.0/576)}, v7")
    A("v_cvt_pk_bf16_f32 v8, v6, v7")
    A("v_lshlrev_b32 v6, 16, v8")
    A("v_and_b32 v7, 0xffff0000, v8")
    A(f"v_add_f32 v7, {f2u(1e-5)}, v7")
    A("v_cvt_pk_bf16_f32 v7, v7, v7")
    A("v_and_b32 v7, 0xffff0000, v7")
    A("v_sqrt_f32 v7, v7")
    A("v_cvt_pk_bf16_f32 v7, v7, v7")
    A("v_and_b32 v7, 0xffff0000, v7")
    A("v_rcp_f32 v7, v7")
    A(f"s_mov_b32 s16, {XF_OFF}")
    for i in range(18):
        a, b = 32+2*i, 33+2*i
        A(f"v_sub_f32 v{a}, v{a}, v6")
        A(f"v_sub_f32 v{b}, v{b}, v6")
        A(f"v_cvt_pk_bf16_f32 v28, v{a}, v{b}")
        A(f"v_lshlrev_b32 v{a}, 16, v28")
        A(f"v_and_b32 v{b}, 0xffff0000, v28")
        A(f"v_mul_f32 v{a}, v{a}, v7")
        A(f"v_mul_f32 v{b}, v{b}, v7")
        A(f"v_cvt_pk_bf16_f32 v{10+i}, v{a}, v{b}")
        if i & 1:
            A(f"buffer_store_dwordx2 v[{9+i}:{10+i}], v4, s[12:15], s16 offen")
            if i < 17: A("s_add_u32 s16, s16, 4096")
    A("s_endpgm")
    A(f"L_{name}_aux:")
    A("v_subrev_u32 v0, 128, v0")
    A("s_lshr_b32 s25, s2, 3"); A("s_and_b32 s26, s2, 7")
    A("v_and_b32 v1, 7, v0"); A("v_lshrrev_b32 v2, 3, v0")
    for p in range(4):
        A(f"v_lshl_add_u32 v3, v1, 2, {p}")
        A(f"v_subrev_u32 v{4+p}, 19, v3")
        A(f"v_cmp_gt_u32 vcc, 9, v{4+p}"); A(f"v_cndmask_b32 v{4+p}, 0, v{4+p}, vcc")
        A("v_add_u32 v8, 567, v3"); A("v_cmp_gt_u32 vcc, 18, v3"); A(f"v_cndmask_b32 v{4+p}, v{4+p}, v8, vcc")
        A("v_add_u32 v8, 288, v3"); A("v_cmp_gt_u32 vcc, 9, v3"); A(f"v_cndmask_b32 v{4+p}, v{4+p}, v8, vcc")
        A(f"v_lshlrev_b32 v{4+p}, 2, v{4+p}")
    A("v_mul_u32_u24 v8, 3456, v2")
    for p in range(4): A(f"v_add_u32 v{4+p}, v{4+p}, v8")
    A(f"s_mul_i32 s27, s26, {72*3456}"); A("s_mul_i32 s28, s25, 36"); A("s_add_u32 s27, s27, s28")
    A("s_waitcnt lgkmcnt(0)")
    c += srd(8, 6, 576*1728*2)
    for it in range(5):
        for p in range(4):
            A(I(f"buffer_load_dword v{16+4*it+p}, v{4+p}, s[8:11], s27 offen", ("e", it)))
        if it < 4: A(f"s_add_u32 s27, s27, {16*3456}")
    c += srd(12, 20, 64 << 20)
    c += srd(16, 22, 576*4608*2)
    PF0 = int(os.environ.get("PF0", 1))
    A("v_and_b32 v9, 63, v0"); A("v_lshlrev_b32 v9, 4, v9"); A("v_lshrrev_b32 v10, 6, v0")
    A("v_mul_u32_u24 v10, 9216, v10"); A("v_add_u32 v9, v9, v10")
    A("s_lshr_b32 s28, s26, 1"); A("s_lshl_b32 s28, s28, 10"); A(f"s_mul_i32 s29, s25, {18*9216}"); A("s_add_u32 s28, s28, s29"); A(f"s_add_u32 s30, s28, {FH*2}")
    if PF0 >= 1:
        for i in range(9):
            A(I(f"buffer_load_dwordx4 v[{40+4*(i%4)}:{43+4*(i%4)}], v9, s[16:19], s30 offen", "pf"))
            A("s_add_u32 s30, s30, 18432")
    if int(os.environ.get("PFC", 0)):
        A("s_getpc_b64 s[32:33]"); A("s_and_b32 s32, s32, 0xffffff00"); A("s_mov_b32 s34, L_text_end-ln_kernel-4096"); A("s_mov_b32 s35, 0x20000")
        A("v_lshlrev_b32 v11, 4, v0"); A("s_mul_i32 s31, s25, 6144")
        for i in range(3):
            A(I(f"buffer_load_dwordx4 v[{56+4*i}:{59+4*i}], v11, s[32:35], s31 offen offset:{i*2048 % 4096}", "pf"))
            if i == 1: A("s_add_u32 s31, s31, 4096")
    if PF0 >= 2:
        for i in range(9):
            A(I(f"buffer_load_dwordx4 v[{40+4*(i%4)}:{43+4*(i%4)}], v9, s[16:19], s28 offen", "pf"))
            A("s_add_u32 s28, s28, 18432")
    if int(os.environ.get("PFT", 0)):
        A("s_lshl_b32 s31, s25, 21"); A("v_lshlrev_b32 v11, 14, v0")
        A(I("buffer_load_dword v60, v11, s[12:15], s31 offen", "pf"))
    for i in range(4): A(f"v_mov_b32 v{12+i}, -1")
    A("v_lshlrev_b32 v11, 4, v0"); A("s_lshl_b32 s28, s2, 11"); A(f"s_add_u32 s28, s28, {ST_OFF}")
    A("buffer_store_dwordx4 v[12:15], v11, s[12:15], s28 offen")
    A("v_lshlrev_b32 v3, 6, v2"); A("v_lshrrev_b32 v8, 2, v1"); A("v_mul_u32_u24 v8, 36864, v8"); A("v_add_u32 v3, v3, v8")
    A("v_and_b32 v8, 3, v1"); A("v_lshl_add_u32 v3, v8, 4, v3")
    A("v_mov_b32 v8, 0x40000000"); A("v_cmp_gt_u32 vcc, 8, v2"); A("v_cndmask_b32 v8, v8, v3, vcc")
    A("s_mul_i32 s27, s25, 73728"); A("s_mul_i32 s28, s26, 4608"); A("s_add_u32 s27, s27, s28"); A(f"s_add_u32 s27, s27, {EI_OFF}")
    for it in range(5):
        A(VM(("e", it)))
        A(f"buffer_store_dwordx4 v[{16+4*it}:{19+4*it}], v{3 if it < 4 else 8}, s[12:15], s27 offen")
        if it < 4: A("s_add_u32 s27, s27, 1024")
    A(f"L_{name}_end:")
    A("s_endpgm")
    return kernel_text(name, finalize(c)), descriptor(name, 72, 72, 40), f"; @launch kernel={name} grid=(256,1,1) block=(256,1,1) lds=0"
```

```python
from asmgen import *
from layout import *
import os

STM0 = os.environ.get('STM0', '')
def gen_k0(name="ln_kernel"):
    c = []
    A = c.append
    A("s_cmp_ge_u32 s2, 256"); A(f"s_cbranch_scc1 L_{name}_end")
    A("s_load_dwordx4 s[4:7], s[0:1], 0")
    A("s_load_dwordx2 s[20:21], s[0:1], 80")
    A("s_load_dwordx2 s[22:23], s[0:1], 32")
    A("v_readfirstlane_b32 s24, v0")
    A("s_cmp_ge_u32 s24, 128"); A(f"s_cbranch_scc1 L_{name}_aux")
    A("v_lshrrev_b32 v1, 4, v0")
    A("v_and_b32 v2, 15, v0")
    A("s_lshl_b32 s3, s2, 3")
    A("v_add_u32 v1, s3, v1")
    A("v_mul_u32_u24 v3, 1152, v1")
    A("v_lshl_add_u32 v3, v2, 3, v3")
    A("s_waitcnt lgkmcnt(0)")
    c += srd(8, 4, S*D*2)
    for i in range(9):
        A(I(f"buffer_load_dwordx2 v[{10+2*i}:{11+2*i}], v3, s[8:11], 0 offen offset:{i*128}", "x"))
    c += srd(12, 20, 64 << 20)
    A("v_lshrrev_b32 v4, 5, v1")
    A("v_mul_u32_u24 v4, 36, v4")
    A("v_lshrrev_b32 v5, 2, v2")
    A("v_add_u32 v4, v4, v5")
    A("v_lshlrev_b32 v4, 10, v4")
    A("v_and_b32 v5, 31, v1")
    A("v_lshl_add_u32 v4, v5, 4, v4")
    A("v_bfe_u32 v5, v2, 1, 1")
    A("v_lshl_add_u32 v4, v5, 9, v4")
    A("v_and_b32 v5, 1, v2")
    A("v_lshl_add_u32 v4, v5, 3, v4")
    A(VM("x"))
    for i in range(18):
        A(f"v_lshlrev_b32 v{32+2*i}, 16, v{10+i}")
        A(f"v_and_b32 v{33+2*i}, 0xffff0000, v{10+i}")
    A("v_add_f32 v6, v32, v33")
    A("v_add_f32 v7, v34, v35")
    for i in range(4, 36, 2):
        A(f"v_add_f32 v6, v6, v{32+i}")
        A(f"v_add_f32 v7, v7, v{33+i}")
    A("v_add_f32 v6, v6, v7")
    def rowsum(r):
        for m in ("quad_perm:[1,0,3,2]", "quad_perm:[2,3,0,1]", "row_half_mirror", "row_mirror"):
            A(f"v_add_f32_dpp v{r}, v{r}, v{r} {m} row_mask:0xf bank_mask:0xf")
    rowsum(6)
    A(f"v_mul_f32 v6, {f2u(1.0/576)}, v6")
    A("v_mov_b32 v7, 0"); A("v_mov_b32 v8, 0")
    for i in range(0, 36, 2):
        A(f"v_sub_f32 v28, v{32+i}, v6")
        A(f"v_sub_f32 v29, v{33+i}, v6")
        A("v_fmac_f32 v7, v28, v28")
        A("v_fmac_f32 v8, v29, v29")
    A("v_add_f32 v7, v7, v8")
    rowsum(7)
    A(f"v_mul_f32 v7, {f2u(1.0/576)}, v7")
    A("v_cvt_pk_bf16_f32 v8, v6, v7")
    A("v_lshlrev_b32 v6, 16, v8")
    A("v_and_b32 v7, 0xffff0000, v8")
    A(f"v_add_f32 v7, {f2u(1e-5)}, v7")
    A("v_cvt_pk_bf16_f32 v7, v7, v7")
    A("v_and_b32 v7, 0xffff0000, v7")
    A("v_sqrt_f32 v7, v7")
    A("v_cvt_pk_bf16_f32 v7, v7, v7")
    A("v_and_b32 v7, 0xffff0000, v7")
    A("v_rcp_f32 v7, v7")
    A(f"s_mov_b32 s16, {XF_OFF}")
    for i in range(18):
        a, b = 32+2*i, 33+2*i
        A(f"v_sub_f32 v{a}, v{a}, v6")
        A(f"v_sub_f32 v{b}, v{b}, v6")
        A(f"v_cvt_pk_bf16_f32 v28, v{a}, v{b}")
        A(f"v_lshlrev_b32 v{a}, 16, v28")
        A(f"v_and_b32 v{b}, 0xffff0000, v28")
        A(f"v_mul_f32 v{a}, v{a}, v7")
        A(f"v_mul_f32 v{b}, v{b}, v7")
        A(f"v_cvt_pk_bf16_f32 v{10+i}, v{a}, v{b}")
        if i & 1:
            A(f"buffer_store_dwordx2 v[{9+i}:{10+i}], v4, s[12:15], s16 offen {STM0}")
            if i < 17: A("s_add_u32 s16, s16, 4096")
    A("s_endpgm")
    A(f"L_{name}_aux:")
    A("v_subrev_u32 v0, 128, v0")
    A("s_lshr_b32 s25, s2, 3"); A("s_and_b32 s26, s2, 7")
    A("v_and_b32 v1, 7, v0"); A("v_lshrrev_b32 v2, 3, v0")
    for p in range(4):
        A(f"v_lshl_add_u32 v3, v1, 2, {p}")
        A(f"v_subrev_u32 v{4+p}, 19, v3")
        A(f"v_cmp_gt_u32 vcc, 9, v{4+p}"); A(f"v_cndmask_b32 v{4+p}, 0, v{4+p}, vcc")
        A("v_add_u32 v8, 567, v3"); A("v_cmp_gt_u32 vcc, 18, v3"); A(f"v_cndmask_b32 v{4+p}, v{4+p}, v8, vcc")
        A("v_add_u32 v8, 288, v3"); A("v_cmp_gt_u32 vcc, 9, v3"); A(f"v_cndmask_b32 v{4+p}, v{4+p}, v8, vcc")
        A(f"v_lshlrev_b32 v{4+p}, 2, v{4+p}")
    A("v_mul_u32_u24 v8, 3456, v2")
    for p in range(4): A(f"v_add_u32 v{4+p}, v{4+p}, v8")
    A(f"s_mul_i32 s27, s26, {72*3456}"); A("s_mul_i32 s28, s25, 36"); A("s_add_u32 s27, s27, s28")
    A("s_waitcnt lgkmcnt(0)")
    c += srd(8, 6, 576*1728*2)
    for it in range(5):
        for p in range(4):
            A(I(f"buffer_load_dword v{16+4*it+p}, v{4+p}, s[8:11], s27 offen", ("e", it)))
        if it < 4: A(f"s_add_u32 s27, s27, {16*3456}")
    c += srd(12, 20, 64 << 20)
    c += srd(16, 22, 576*4608*2)
    PF0 = int(os.environ.get("PF0", 1))
    A("v_and_b32 v9, 63, v0"); A("v_lshlrev_b32 v9, 4, v9"); A("v_lshrrev_b32 v10, 6, v0")
    A("v_mul_u32_u24 v10, 9216, v10"); A("v_add_u32 v9, v9, v10")
    A("s_lshr_b32 s28, s26, 1"); A("s_lshl_b32 s28, s28, 10"); A(f"s_mul_i32 s29, s25, {18*9216}"); A("s_add_u32 s28, s28, s29"); A(f"s_add_u32 s30, s28, {FH*2}")
    if PF0 >= 1:
        for i in range(9):
            A(I(f"buffer_load_dwordx4 v[{40+4*(i%4)}:{43+4*(i%4)}], v9, s[16:19], s30 offen", "pf"))
            A("s_add_u32 s30, s30, 18432")
    if int(os.environ.get("PFC", 0)):
        A("s_getpc_b64 s[32:33]"); A("s_and_b32 s32, s32, 0xffffff00"); A("s_mov_b32 s34, L_text_end-ln_kernel-4096"); A("s_mov_b32 s35, 0x20000")
        A("v_lshlrev_b32 v11, 4, v0"); A("s_mul_i32 s31, s25, 6144")
        for i in range(3):
            A(I(f"buffer_load_dwordx4 v[{56+4*i}:{59+4*i}], v11, s[32:35], s31 offen offset:{i*2048 % 4096}", "pf"))
            if i == 1: A("s_add_u32 s31, s31, 4096")
    if PF0 >= 2:
        for i in range(9):
            A(I(f"buffer_load_dwordx4 v[{40+4*(i%4)}:{43+4*(i%4)}], v9, s[16:19], s28 offen", "pf"))
            A("s_add_u32 s28, s28, 18432")
    if int(os.environ.get("PFT", 0)):
        A("s_lshl_b32 s31, s25, 21"); A("v_lshlrev_b32 v11, 14, v0")
        A(I("buffer_load_dword v60, v11, s[12:15], s31 offen", "pf"))
    for i in range(4): A(f"v_mov_b32 v{12+i}, -1")
    A("v_lshlrev_b32 v11, 4, v0"); A("s_lshl_b32 s28, s2, 11"); A(f"s_add_u32 s28, s28, {ST_OFF}")
    A(f"buffer_store_dwordx4 v[12:15], v11, s[12:15], s28 offen {STM0}")
    A("v_lshlrev_b32 v3, 6, v2"); A("v_lshrrev_b32 v8, 2, v1"); A("v_mul_u32_u24 v8, 36864, v8"); A("v_add_u32 v3, v3, v8")
    A("v_and_b32 v8, 3, v1"); A("v_lshl_add_u32 v3, v8, 4, v3")
    A("v_mov_b32 v8, 0x40000000"); A("v_cmp_gt_u32 vcc, 8, v2"); A("v_cndmask_b32 v8, v8, v3, vcc")
    A("s_mul_i32 s27, s25, 73728"); A("s_mul_i32 s28, s26, 4608"); A("s_add_u32 s27, s27, s28"); A(f"s_add_u32 s27, s27, {EI_OFF}")
    for it in range(5):
        A(VM(("e", it)))
        A(f"buffer_store_dwordx4 v[{16+4*it}:{19+4*it}], v{3 if it < 4 else 8}, s[12:15], s27 offen {STM0}")
        if it < 4: A("s_add_u32 s27, s27, 1024")
    A(f"L_{name}_end:")
    A("s_endpgm")
    return kernel_text(name, finalize(c)), descriptor(name, 72, 72, 40), f"; @launch kernel={name} grid=(256,1,1) block=(256,1,1) lds=0"
```
